```python
import torch

def _softmax(x, axis=-1):
    return torch.softmax(x, dim=axis)
def _gelu(x):
    return torch.nn.functional.gelu(x, approximate="tanh")
def _silu(x):
    return torch.nn.functional.silu(x)
def _sigmoid(x):
    return torch.sigmoid(x)
def _layernorm(x, axis=-1, eps=1e-5):
    m = x.mean(dim=axis, keepdim=True)
    v = x.var(dim=axis, keepdim=True, unbiased=False)
    return (x - m) / torch.sqrt(v + eps)
def _scatter_add(tgt, idx, src, axis=0):
    return tgt.clone().index_add_(axis, idx, src)
def _segment_sum(src, seg, n):
    out = torch.zeros((n,) + src.shape[1:], dtype=src.dtype)
    return out.index_add_(0, seg, src)
def _pad(x, pw):
    flat = tuple(v for pair in reversed(pw) for v in pair)
    return torch.nn.functional.pad(x, flat)

kernel_name = 'interleave_layers__spectral_gfnet__glu_gated_swiglu__prompt'

def setup_inputs():

    _w = (lambda a: (lambda t: t.to(torch.bfloat16) if t.is_floating_point() else t)(torch.as_tensor(a)))
    def _A_setup():
        B, S, D = 1, 2048, 512
        Df = D // 2 + 1
        return {
            "x": _w((lambda *s: torch.randn(*s, dtype=torch.bfloat16) * 0.05)(B, S, D)),
            "w_r": _w((lambda *s: torch.randn(*s, dtype=torch.bfloat16) * 0.4)(S, Df) * 0.02),
            "w_i": _w((lambda *s: torch.randn(*s, dtype=torch.bfloat16) * 0.4)(S, Df) * 0.02),
        }
    _A_in = _A_setup()

    def _B_setup():
        B, S, D, F = 1, 2048, 512, 1792
        return {
            "x": _w((lambda *s: torch.randn(*s, dtype=torch.bfloat16) * 0.05)(B, S, D)),
            "w1": _w((lambda *s: torch.randn(*s, dtype=torch.bfloat16) * 0.2)(D, F) * (2.0 / D) ** 0.5),
            "w3": _w((lambda *s: torch.randn(*s, dtype=torch.bfloat16) * 0.2)(D, F) * (2.0 / D) ** 0.5),
            "w2": _w((lambda *s: torch.randn(*s, dtype=torch.bfloat16) * 0.2)(F, D) * (2.0 / F) ** 0.5),
        }
    _B_in = _B_setup()

    return {
        "A_x": _A_in["x"],
        "A_w_r": _A_in["w_r"],
        "A_w_i": _A_in["w_i"],
        "B_x": _B_in["x"],
        "B_w1": _B_in["w1"],
        "B_w3": _B_in["w3"],
        "B_w2": _B_in["w2"],
    }

def reference(A_x, A_w_r, A_w_i, B_x, B_w1, B_w3, B_w2):
    def _A_ref(x, w_r, w_i):
        B, S, D = x.shape
        X = (lambda x, axes=(-2,-1): torch.fft.rfft2(x.float(), dim=axes))(x, axes=(-2, -1))
        W = w_r + 1j * w_i
        X = X * W
        y = (lambda x, s, axes=(-2,-1): torch.fft.irfft2(x, s=s, dim=axes).to(torch.bfloat16))(X, (S, D), axes=(-2, -1))
        return y

    def _B_ref(x, w1, w3, w2):
        gate = torch.einsum("bsd,df->bsf", x, w1)
        up = torch.einsum("bsd,df->bsf", x, w3)
        h = _silu(gate) * up
        out = torch.einsum("bsf,fd->bsd", h, w2)
        return out

    x = A_x
    x = x + _A_ref(_layernorm(x, axis=-1), A_w_r, A_w_i)
    x = x + _B_ref(_layernorm(x, axis=-1), B_w1, B_w3, B_w2)
    x = x + _A_ref(_layernorm(x, axis=-1), A_w_r, A_w_i)
    x = x + _B_ref(_layernorm(x, axis=-1), B_w1, B_w3, B_w2)
    return x
```

```python
from tile import *

def col_phase(k, Uin, Uout, SSin, Lend):
    R = Regs()
    ZO, GO, HO = 0, 8192, 16384
    table_base(k, 6, 'CT')
    k('s_lshl_b32 s28, s2, 13')
    k(f's_add_u32 s29, s28, {hex(Uin)}')
    srd(k, 12, 4, 's29', 8192)
    srd(k, 16, 4, SSin, 8192)
    vU = R.v(8); vS = R.v(8); voff = R.v(); vl16 = R.v(); vlane = R.v()
    k(f'v_lshlrev_b32 v{voff}, 5, v0')
    k(f'buffer_load_dwordx4 {vr(vU,4)}, v{voff}, s[12:15], 0 offen')
    k(f'buffer_load_dwordx4 {vr(vU+4,4)}, v{voff}, s[12:15], 0 offen offset:16')
    k(f'buffer_load_dwordx4 {vr(vS,4)}, v{voff}, s[16:19], 0 offen')
    k(f'buffer_load_dwordx4 {vr(vS+4,4)}, v{voff}, s[16:19], 0 offen offset:16')
    srd(k, 8, 6, 0, T.CT_SIZE)
    k(f's_add_u32 s29, s28, {hex(WP)}')
    srd(k, 20, 4, 's29', 8192)
    k(f's_add_u32 s29, s28, {hex(Uout)}')
    srd(k, 24, 4, 's29', 8192)
    k(f'v_and_b32 v{vlane}, 63, v0')
    k(f'v_lshlrev_b32 v{vl16}, 4, v{vlane}')
    k('s_and_b32 s30, s3, 1\ns_lshr_b32 s31, s3, 1')
    C64 = [[R.v(4) for ks in range(2)] for nt in range(2)]
    S64 = [[R.v(4) for ks in range(2)] for nt in range(2)]
    N64 = [[R.v(4) for ks in range(2)] for nt in range(2)]
    k(f's_lshl_b32 s32, s31, 12\ns_add_u32 s33, s32, {T.CT_S64}')
    for nt in range(2):
        for ks in range(2):
            k(f'buffer_load_dwordx4 {vr(C64[nt][ks],4)}, v{vl16}, s[8:11], s32 offen offset:{(nt*2+ks)*1024}')
            k(f'buffer_load_dwordx4 {vr(S64[nt][ks],4)}, v{vl16}, s[8:11], s33 offen offset:{(nt*2+ks)*1024}')
    TW1 = [R.v(4) for q in range(4)]
    k(f's_lshl_b32 s34, s3, 12\ns_add_u32 s35, s34, {T.CT_TW3}\ns_add_u32 s34, s34, {T.CT_TW1}')
    for q in range(4):
        k(f'buffer_load_dwordx4 {vr(TW1[q],4)}, v{vl16}, s[8:11], s34 offen offset:{q*1024}')
    C32 = [R.v(4) for t in range(2)]; S32 = [R.v(4) for t in range(2)]; N32 = [R.v(4) for t in range(2)]
    k(f's_mov_b32 s36, {T.CT_C32}')
    for t in range(2):
        k(f'buffer_load_dwordx4 {vr(C32[t],4)}, v{vl16}, s[8:11], s36 offen offset:{t*1024}')
        k(f'buffer_load_dwordx4 {vr(S32[t],4)}, v{vl16}, s[8:11], s36 offen offset:{2048+t*1024}')
    WPv = [R.v(4) for t in range(2)]
    vt16 = R.v()
    k(f'v_lshlrev_b32 v{vt16}, 4, v0')
    k('s_movk_i32 s37, 0x1000')
    k(f'buffer_load_dwordx4 {vr(WPv[0],4)}, v{vt16}, s[20:23], 0 offen')
    k(f'buffer_load_dwordx4 {vr(WPv[1],4)}, v{vt16}, s[20:23], s37 offen')
    TW3 = [R.v(4) for q in range(4)]
    for q in range(4):
        k(f'buffer_load_dwordx4 {vr(TW3[q],4)}, v{vl16}, s[8:11], s35 offen offset:{q*1024}')
    vn = R.v(); vg = R.v(); vo = R.v(); tA = R.v(); tB = R.v()
    k(f'v_and_b32 v{vn}, 15, v{vlane}')
    k(f'v_lshrrev_b32 v{vg}, 4, v{vlane}')
    k(f'v_lshlrev_b32 v{vo}, 7, v{vn}')
    k(f'v_lshl_or_b32 v{vo}, v{vg}, 4, v{vo}')
    k('s_lshl_b32 s38, s31, 12\ns_lshl_b32 s39, s30, 6\ns_add_u32 s38, s38, s39')
    UO = [R.v(4) for nt in range(2)]
    for nt in range(2):
        k(f'buffer_load_dwordx4 {vr(UO[nt],4)}, v{vo}, s[12:15], s38 offen offset:{nt*2048}')
    k(f's_mov_b32 s40, {hex(T.f32(1/512))}')
    k('s_cmp_eq_u32 s2, 0\ns_cselect_b32 s41, 0, 0xffff0000')
    k(f's_cselect_b32 s43, 0, {hex(T.f32(1/2048))}')
    k(f's_mov_b32 s42, {hex(T.f32(1/2048))}')
    k('s_mov_b32 s44, 0x80008000')
    veps = R.v()
    k(f'v_mov_b32 v{veps}, {hex(T.f32(1e-5))}')
    aZw = R.v(); aZr = R.v(); aGw = R.v(); aGr = R.v(); aHw = R.v(); aHr = [R.v(), R.v()]
    k(f'v_bfe_u32 v{tA}, v0, 5, 1')
    k(f'v_lshlrev_b32 v{tA}, 1, v{tA}')
    k(f'v_xor_b32 v{tA}, v{tA}, v0')
    k(f'v_and_b32 v{tA}, 3, v{tA}')
    k(f'v_lshlrev_b32 v{tA}, 4, v{tA}')
    k(f'v_lshrrev_b32 v{tB}, 2, v0')
    k(f'v_lshl_or_b32 v{aZw}, v{tB}, 6, v{tA}')
    k(f'v_bfe_u32 v{tA}, v{vlane}, 2, 2')
    k(f'v_lshl_add_u32 v{tA}, v{vg}, 3, v{tA}')
    k(f'v_lshlrev_b32 v{tA}, 6, v{tA}')
    k(f'v_xor_b32 v{tB}, s30, v{vg}')
    k(f'v_and_b32 v{tB}, 1, v{tB}')
    k(f'v_lshl_or_b32 v{tA}, v{tB}, 5, v{tA}')
    k(f'v_and_b32 v{tB}, 3, v{vlane}')
    k(f'v_lshl_or_b32 v{aZr}, v{tB}, 3, v{tA}')
    vsl = R.v()
    k(f'v_lshrrev_b32 v{tA}, 2, v{vn}')
    k(f'v_sub_u32 v{tA}, 0, v{tA}')
    k(f'v_xor_b32 v{tA}, v{tA}, v{vg}')
    k(f'v_and_b32 v{tA}, 3, v{tA}')
    k(f'v_lshlrev_b32 v{vsl}, 4, v{tA}')
    k(f'v_lshl_or_b32 v{vsl}, v{vn}, 6, v{vsl}')
    k(f's_lshl_b32 s45, s31, 11\ns_lshl_b32 s46, s30, 3\ns_add_u32 s45, s45, s46\ns_add_u32 s45, s45, {GO}')
    k(f'v_add_u32 v{aGw}, s45, v{vsl}')
    k(f's_lshl_b32 s45, s3, 10\ns_add_u32 s45, s45, {GO}')
    k(f'v_add_u32 v{aGr}, s45, v{vsl}')
    k(f'v_lshrrev_b32 v{tA}, 1, v{vg}')
    k('s_lshl_b32 s45, s3, 1')
    k(f'v_add_u32 v{tA}, s45, v{tA}')
    k(f'v_xor_b32 v{tA}, v{tA}, v{vn}')
    k(f'v_and_b32 v{tA}, 7, v{tA}')
    k(f'v_lshlrev_b32 v{tA}, 4, v{tA}')
    k(f'v_and_b32 v{tB}, 1, v{vg}')
    k(f'v_lshl_or_b32 v{tA}, v{tB}, 3, v{tA}')
    k(f'v_lshl_or_b32 v{tA}, v{vn}, 7, v{tA}')
    k(f'v_add_u32 v{aHw}, {HO}, v{tA}')
    for ks in range(2):
        k(f'v_add_u32 v{tA}, {4*ks}, v{vg}')
        k(f'v_xor_b32 v{tA}, v{tA}, v{vn}')
        k(f'v_and_b32 v{tA}, 7, v{tA}')
        k(f'v_lshlrev_b32 v{tA}, 4, v{tA}')
        k(f'v_lshl_or_b32 v{tA}, v{vn}, 7, v{tA}')
        k(f's_lshl_b32 s45, s30, 11\ns_add_u32 s45, s45, {HO}')
        k(f'v_add_u32 v{aHr[ks]}, s45, v{tA}')
    wk = R.v(32)
    for i in range(8):
        k(f'v_fma_f32 v{vS+i}, v{vS+i}, s40, v{veps}')
    for i in range(8):
        k(f'v_rsq_f32 v{vS+i}, v{vS+i}')
    re, im = wk, wk + 8
    for i in range(8):
        k(f'v_lshlrev_b32 v{re+i}, 16, v{vU+i}')
        k(f'v_and_b32 v{im+i}, s41, v{vU+i}')
    for i in range(8):
        k(f'v_mul_f32 v{re+i}, v{re+i}, v{vS+i}')
        k(f'v_mul_f32 v{im+i}, v{im+i}, v{vS+i}')
    zr, zi = wk + 16, wk + 20
    for i in range(4):
        k(f'v_cvt_pk_bf16_f32 v{zr+i}, v{re+2*i}, v{re+2*i+1}')
    k(f'ds_write_b128 v{aZw}, {vr(zr,4)} offset:{ZO}')
    for i in range(4):
        k(f'v_cvt_pk_bf16_f32 v{zi+i}, v{im+2*i}, v{im+2*i+1}')
    k(f'ds_write_b128 v{aZw}, {vr(zi,4)} offset:{ZO+4096}')
    for nt in range(2):
        for ks in range(2):
            for i in range(4): k(f'v_xor_b32 v{N64[nt][ks]+i}, s44, v{S64[nt][ks]+i}')
    k.barrier()
    A = [[wk + 8 * ks + 4 * pl for pl in range(2)] for ks in range(2)]
    for ks in range(2):
        for pl in range(2):
            for sub in range(2):
                k(f'ds_read_b64_tr_b16 {vr(A[ks][pl]+2*sub,2)}, v{aZr} offset:{ZO+ks*2048+sub*256+pl*4096}')
    acc = R.v(16)
    Gr = [acc, acc + 4]; Gi = [acc + 8, acc + 12]
    def mf(d, a, b, first): k(f'v_mfma_f32_16x16x32_bf16 {vr(d,4)}, {vr(a,4)}, {vr(b,4)}, {"0" if first else vr(d,4)}')
    for ks in range(2):
        for nt in range(2): mf(Gr[nt], A[ks][0], C64[nt][ks], ks == 0)
        for nt in range(2): mf(Gi[nt], A[ks][1], C64[nt][ks], ks == 0)
        for nt in range(2): mf(Gr[nt], A[ks][1], S64[nt][ks], False)
        for nt in range(2): mf(Gi[nt], A[ks][0], N64[nt][ks], False)
    for t in range(2):
        for i in range(4): k(f'v_xor_b32 v{N32[t]+i}, s44, v{S32[t]+i}')
    def twiddle(xr, xi, c, s, sign, dst_r, dst_i, tmp):
        for i in range(4):
            k(f'v_mul_f32 v{tmp+i}, v{xi+i}, v{s+i}')
            k(f'v_mul_f32 v{tmp+4+i}, v{xr+i}, v{s+i}')
        for i in range(4):
            if sign < 0:
                k(f'v_fma_f32 v{tmp+i}, v{xr+i}, v{c+i}, v{tmp+i}')
                k(f'v_fma_f32 v{tmp+4+i}, v{xi+i}, v{c+i}, -v{tmp+4+i}')
            else:
                k(f'v_fma_f32 v{tmp+i}, v{xr+i}, v{c+i}, -v{tmp+i}')
                k(f'v_fma_f32 v{tmp+4+i}, v{xi+i}, v{c+i}, v{tmp+4+i}')
        for i in range(2):
            k(f'v_cvt_pk_bf16_f32 v{dst_r+i}, v{tmp+2*i}, v{tmp+2*i+1}')
            k(f'v_cvt_pk_bf16_f32 v{dst_i+i}, v{tmp+4+2*i}, v{tmp+4+2*i+1}')
    pk = R.v(16)
    for nt in range(2):
        twiddle(Gr[nt], Gi[nt], TW1[2*nt], TW1[2*nt+1], -1, pk + 4*nt, pk + 4*nt + 2, wk + 8*nt)
        k(f'ds_write_b64 v{aGw}, {vr(pk+4*nt,2)} offset:{nt*1024}')
        k(f'ds_write_b64 v{aGw}, {vr(pk+4*nt+2,2)} offset:{nt*1024+4096}')
    Wr = R.v(8); Wi = WPv[0]; assert WPv[1] == Wi + 4
    for t in range(2):
        for i in range(4):
            k(f'v_lshlrev_b32 v{Wr+4*t+i}, 16, v{WPv[t]+i}')
            k(f'v_and_b32 v{Wi+4*t+i}, 0xffff0000, v{WPv[t]+i}')
    k.barrier()
    Bgr, Bgi = wk, wk + 4
    k(f'ds_read_b128 {vr(Bgr,4)}, v{aGr}')
    k(f'ds_read_b128 {vr(Bgi,4)}, v{aGr} offset:4096')
    Xr = [acc, acc + 4]; Xi = [acc + 8, acc + 12]
    for t in range(2): mf(Xr[t], C32[t], Bgr, True)
    for t in range(2): mf(Xi[t], N32[t], Bgr, True)
    for t in range(2): mf(Xr[t], S32[t], Bgi, False)
    for t in range(2): mf(Xi[t], C32[t], Bgi, False)
    Yr, Yi = pk, pk + 4
    for t in range(2):
        tmp = wk + 8 + 8 * t
        for i in range(4):
            k(f'v_mul_f32 v{tmp+i}, v{Xi[t]+i}, v{Wi+4*t+i}')
            k(f'v_mul_f32 v{tmp+4+i}, v{Xi[t]+i}, v{Wr+4*t+i}')
        for i in range(4):
            k(f'v_fma_f32 v{tmp+i}, v{Xr[t]+i}, v{Wr+4*t+i}, -v{tmp+i}')
            k(f'v_fma_f32 v{tmp+4+i}, v{Xr[t]+i}, v{Wi+4*t+i}, v{tmp+4+i}')
        for i in range(2):
            k(f'v_cvt_pk_bf16_f32 v{Yr+2*t+i}, v{tmp+2*i}, v{tmp+2*i+1}')
            k(f'v_cvt_pk_bf16_f32 v{Yi+2*t+i}, v{tmp+4+2*i}, v{tmp+4+2*i+1}')
    acc2 = vU; assert vS == vU + 8
    Hr = [acc2, acc2 + 4]; Hi = [acc2 + 8, acc2 + 12]
    for nt in range(2): mf(Hr[nt], Yr, C32[nt], True)
    for nt in range(2): mf(Hi[nt], Yr, S32[nt], True)
    for nt in range(2): mf(Hr[nt], Yi, N32[nt], False)
    for nt in range(2): mf(Hi[nt], Yi, C32[nt], False)
    Or = R.v(8); Oi = UO[0]; assert UO[1] == Oi + 4
    for nt in range(2):
        for i in range(4):
            k(f'v_lshlrev_b32 v{Or+4*nt+i}, 16, v{UO[nt]+i}')
            k(f'v_and_b32 v{Oi+4*nt+i}, 0xffff0000, v{UO[nt]+i}')
    for nt in range(2):
        twiddle(Hr[nt], Hi[nt], TW3[2*nt], TW3[2*nt+1], +1, pk + 8 + 4*nt, pk + 8 + 4*nt + 2, wk + 8*nt)
        k(f'ds_write_b64 v{aHw}, {vr(pk+8+4*nt,2)} offset:{nt*2048}')
        k(f'ds_write_b64 v{aHw}, {vr(pk+8+4*nt+2,2)} offset:{nt*2048+4096}')
    k.barrier()
    for ks in range(2):
        for pl in range(2):
            k(f'ds_read_b128 {vr(A[ks][pl],4)}, v{aHr[ks]} offset:{pl*4096}')
    Tr = [acc, acc + 4]; Ti = [acc + 8, acc + 12]
    for ks in range(2):
        for nt in range(2): mf(Tr[nt], A[ks][0], C64[nt][ks], ks == 0)
        for nt in range(2): mf(Ti[nt], A[ks][0], S64[nt][ks], ks == 0)
        for nt in range(2): mf(Tr[nt], A[ks][1], N64[nt][ks], False)
        for nt in range(2): mf(Ti[nt], A[ks][1], C64[nt][ks], False)
    for nt in range(2):
        for i in range(4):
            k(f'v_fma_f32 v{Or+4*nt+i}, v{Tr[nt]+i}, s42, v{Or+4*nt+i}')
            k(f'v_fma_f32 v{Oi+4*nt+i}, v{Ti[nt]+i}, s43, v{Oi+4*nt+i}')
        for i in range(4):
            k(f'v_cvt_pk_bf16_f32 v{pk+4*nt+i}, v{Or+4*nt+i}, v{Oi+4*nt+i}')
        k(f'buffer_store_dwordx4 {vr(pk+4*nt,4)}, v{vo}, s[24:27], s38 offen offset:{nt*2048}')
    k('s_endpgm')
    return R.hi

def w2f_job(k):
    R = Regs()
    k('s_load_dwordx2 s[6:7], s[0:1], 48')
    k('s_sub_u32 s20, s2, 256')
    srd(k, 8, 6, 0, 1792 * 1024)
    srd(k, 12, 4, W2F, W2F_SZ)
    vlane = R.v(); voff = R.v(); vl16 = R.v(); t = R.v()
    k(f'v_and_b32 v{vlane}, 63, v0')
    k(f'v_lshlrev_b32 v{vl16}, 4, v{vlane}')
    k(f'v_and_b32 v{t}, 31, v{vlane}')
    k(f'v_lshlrev_b32 v{t}, 1, v{t}')
    k(f'v_lshrrev_b32 v{voff}, 5, v{vlane}')
    k(f'v_lshl_or_b32 v{voff}, v{voff}, 12, v{t}')
    k('s_lshl_b32 s21, s20, 14\ns_lshl_b32 s22, s3, 8\ns_add_u32 s21, s21, s22')
    for i in range(8): k(f's_add_u32 s{24+i}, s21, {(8*(i>>2) + (i&3))*1024}')
    d = R.v(32)
    for q in range(4):
        for i in range(8):
            k(f'buffer_load_ushort v{d+8*q+i}, v{voff}, s[8:11], s{24+i} offen offset:{q*64}')
    k('s_mul_i32 s22, s3, 458752\ns_lshl_b32 s23, s20, 10\ns_add_u32 s22, s22, s23')
    o = R.v(16)
    for q in range(4):
        for i in range(4):
            k(f'v_lshl_or_b32 v{o+4*q+i}, v{d+8*q+2*i+1}, 16, v{d+8*q+2*i}')
        k(f'buffer_store_dwordx4 {vr(o+4*q,4)}, v{vl16}, s[12:15], s22 offen')
        if q < 3: k('s_add_u32 s22, s22, 114688')
    k('s_endpgm')

def col_kernel(name, Uin, Uout, SSin, with_w2f):
    k = Asm()
    Lend, Lw = uid('ce'), uid('cw')
    k(f's_cmp_ge_u32 s2, {368 if with_w2f else 256}\ns_cbranch_scc1 {Lend}')
    k('s_load_dwordx2 s[4:5], s[0:1], 72')
    wave_id(k, 3, 1)
    if with_w2f: k(f's_cmp_ge_u32 s2, 256\ns_cbranch_scc1 {Lw}')
    hi = col_phase(k, Uin, Uout, SSin, Lend)
    if with_w2f:
        k.label(Lw); w2f_job(k)
    k.label(Lend)
    k('s_endpgm')
    print('  col vgprs', hi)
    return khead(name) + finalize(k, True) + kdesc(name, hi)
```

```python
from dsl import *
import tables as T

U0, U1, U2, U3 = 0x000000, 0x200000, 0x400000, 0x600000
W13F = 0x800000; W13F_SZ = 56 * 2 * 32768
W2PF = 0xC00000; W2F = 0xE00000; W2F_SZ = 16 * 112 * 1024
HB = 0x1000000; HB_SZ = 64 * 112 * 1024
WP = 0x1800000
SS0 = 0x1A00000; SS2 = 0x1A02000
X3 = 0x1C00000
USZ = 0x200000
KA_X, KA_WR, KA_WI, KA_W1, KA_W3, KA_W2, KA_OUT, KA_DBG, KA_WS = 0, 8, 16, 32, 40, 48, 56, 64, 72
SRD3 = 0x00020000

_uid = [0]
def uid(p='L'):
    _uid[0] += 1
    return f'{p}{_uid[0]}'

def srd(k, d, base, off, size):
    if off == 0:
        k(f's_mov_b32 s{d}, s{base}\ns_mov_b32 s{d+1}, s{base+1}')
    else:
        o = off if isinstance(off, str) else hex(off)
        k(f's_add_u32 s{d}, s{base}, {o}\ns_addc_u32 s{d+1}, s{base+1}, 0')
    z = size if isinstance(size, str) else hex(size)
    k(f's_mov_b32 s{d+2}, {z}\ns_mov_b32 s{d+3}, {hex(SRD3)}')

def table_base(k, d, name):
    k(f's_getpc_b64 s[{d}:{d+1}]')
    k(f's_add_u32 s{d}, s{d}, {name}@rel32@lo+4')
    k(f's_addc_u32 s{d+1}, s{d+1}, {name}@rel32@hi+12')

def wave_id(k, sdst, vtmp):
    k(f'v_lshrrev_b32 v{vtmp}, 6, v0')
    k(f'v_readfirstlane_b32 s{sdst}, v{vtmp}')

def kdesc(name, vgpr=256, sgpr=102):
    acc = (vgpr + 3) // 4 * 4
    return f'''.section .rodata,"a"
.p2align 6
.amdhsa_kernel {name}
  .amdhsa_next_free_vgpr {vgpr}
  .amdhsa_next_free_sgpr {sgpr}
  .amdhsa_accum_offset {acc}
  .amdhsa_group_segment_fixed_size 0
  .amdhsa_kernarg_size 80
  .amdhsa_user_sgpr_count 2
  .amdhsa_user_sgpr_kernarg_segment_ptr 1
  .amdhsa_system_sgpr_workgroup_id_x 1
.end_amdhsa_kernel
.text
'''
def khead(name):
    return f'.globl {name}\n.p2align 8\n.type {name},@function\n{name}:\n'

def interleave(k, mfmas, fillers, per=None):
    n = len(mfmas); f = list(fillers); tot = len(f); done = 0
    for i, m in enumerate(mfmas):
        k(m)
        upto = (tot * (i + 1) + n - 1) // n if per is None else min(tot, per * (i + 1))
        if i == n - 1: upto = tot
        while done < upto:
            x = f[done]; done += 1
            if isinstance(x, tuple): k(x[0], tag=x[1])
            elif callable(x): x()
            else: k(x)
```

```python
import re

class Ins:
    __slots__ = ('kind', 'text', 'mn', 'ops', 'mods', 'rd', 'wr', 'tag', 'cls', 'info')
    def __init__(self, kind, text, tag=None):
        self.kind = kind
        self.text = text
        self.tag = tag
        self.mn = None; self.ops = []; self.mods = ''
        self.rd = set(); self.wr = set(); self.cls = None; self.info = {}

_reg_re = re.compile(r'^(-|\|)?([vas])(\d+)\|?$')
_rng_re = re.compile(r'^(-|\|)?([vas])\[(\d+):(\d+)\]\|?$')

def regs_of(op):
    op = op.strip()
    if op.startswith('neg(') or op.startswith('abs('):
        op = op[4:-1]
    m = _reg_re.match(op)
    if m: return {(m.group(2), int(m.group(3)))}
    m = _rng_re.match(op)
    if m: return {(m.group(2), i) for i in range(int(m.group(3)), int(m.group(4)) + 1)}
    if op in ('vcc',): return {('s', 'vcc_lo'), ('s', 'vcc_hi')}
    if op in ('vcc_lo', 'vcc_hi', 'm0', 'exec_lo', 'exec_hi'): return {('s', op)}
    if op == 'exec': return {('s', 'exec_lo'), ('s', 'exec_hi')}
    return set()

def split_ops(s):
    out = []; depth = 0; cur = ''
    for ch in s:
        if ch == '[': depth += 1
        if ch == ']': depth -= 1
        if ch == ',' and depth == 0:
            out.append(cur.strip()); cur = ''
        else: cur += ch
    if cur.strip(): out.append(cur.strip())
    return out

TRANS = ('v_exp_f32', 'v_log_f32', 'v_rcp_f32', 'v_rsq_f32', 'v_sqrt_f32', 'v_sin_f32', 'v_cos_f32', 'v_rcp_iflag_f32',
         'v_exp_f16', 'v_log_f16', 'v_rcp_f16', 'v_rsq_f16', 'v_sqrt_f16', 'v_sin_f16', 'v_cos_f16')
VCC = {('s', 'vcc_lo'), ('s', 'vcc_hi')}
EXEC = {('s', 'exec_lo'), ('s', 'exec_hi')}

def base_mn(mn):
    for suf in ('_e32', '_e64', '_sdwa', '_dpp'):
        if mn.endswith(suf): return mn[:-len(suf)]
    return mn

def parse(i):
    t = i.text.split(';')[0].strip()
    sp = t.split(None, 1)
    mn = sp[0]; rest = sp[1] if len(sp) > 1 else ''
    i.mn = mn
    ops = split_ops(rest)
    mods = ''
    if ops:
        last = ops[-1]
        m = re.match(r'^(\S+)\s+(.*)$', last)
        if m:
            ops[-1] = m.group(1); mods = m.group(2)
    i.ops = ops; i.mods = mods
    b = base_mn(mn)
    R = lambda k: regs_of(ops[k]) if k < len(ops) else set()
    def allr(a, z=None):
        s = set()
        for k in range(a, len(ops) if z is None else z): s |= R(k)
        return s
    if b.startswith('v_mfma'):
        i.cls = 'mfma'
        i.wr = R(0); i.rd = allr(1)
        i.info['C'] = R(3); i.info['AB'] = R(1) | R(2); i.info['D'] = R(0)
        i.info['passes'] = 8 if '32x32x16' in b else 4 if '16x16x32' in b else None
        assert i.info['passes'], mn
    elif b.startswith('v_'):
        i.cls = 'valu'
        if b.startswith('v_cmpx'):
            i.wr = set(EXEC) | R(0); i.rd = allr(1)
        elif b.startswith('v_cmp'):
            i.wr = R(0); i.rd = allr(1)
        elif b in ('v_add_co_u32', 'v_sub_co_u32', 'v_subrev_co_u32'):
            i.wr = R(0) | R(1); i.rd = allr(2)
        elif b in ('v_addc_co_u32', 'v_subb_co_u32'):
            i.wr = R(0) | R(1); i.rd = allr(2)
        elif b in ('v_permlane32_swap_b32', 'v_permlane16_swap_b32', 'v_swap_b32'):
            i.wr = R(0) | R(1); i.rd = R(0) | R(1)
        elif b in ('v_fmac_f32', 'v_dot2c_f32_bf16', 'v_dot2c_f32_f16', 'v_pk_fmac_f16', 'v_fma_mixlo_f16', 'v_fma_mixhi_f16',
                   'v_writelane_b32', 'v_mac_f32', 'v_fma_mixlo_bf16', 'v_fma_mixhi_bf16'):
            i.wr = R(0); i.rd = allr(0)
        elif b == 'v_nop':
            pass
        else:
            i.wr = R(0); i.rd = allr(1)
            if 'dst_unused:UNUSED_PRESERVE' in mods: i.rd |= R(0)
        if b == 'v_cndmask_b32' and len(ops) == 3: i.rd |= VCC
        i.info['trans'] = b in TRANS
        i.info['dot'] = b if b.startswith('v_dot') else None
        i.info['perm'] = b.startswith('v_permlane')
        i.info['dpp'] = ('quad_perm' in mods or 'row_' in mods or 'wave_' in mods or mn.endswith('_dpp'))
        i.info['rl'] = b in ('v_readlane_b32', 'v_readfirstlane_b32')
        i.info['lanesel'] = (R(2) if b in ('v_readlane_b32', 'v_writelane_b32') else set())
        i.info['bitpos'] = (b in ('v_fma_mixhi_f16', 'v_fma_mixlo_f16', 'v_fma_mixhi_bf16', 'v_fma_mixlo_bf16') or
                            ('dst_sel' in mods and 'dst_sel:DWORD' not in mods))
        assert 'lds' not in mods
    elif b.startswith('ds_'):
        i.cls = 'ds'
        if b.startswith('ds_read') or b.startswith('ds_bpermute') or b.startswith('ds_permute') or b.startswith('ds_swizzle'):
            i.wr = R(0); i.rd = allr(1); i.info['load'] = True
        else:
            i.rd = allr(0); i.info['load'] = False
    elif b.startswith('buffer_') or b.startswith('global_'):
        i.cls = 'vmem'
        toks = mods.split()
        islds = ('lds' in toks) or b.startswith('global_load_lds')
        i.info['lds'] = islds
        if b in ('buffer_wbl2', 'buffer_inv'):
            i.info['load'] = False
        elif islds:
            i.rd = allr(0) | {('s', 'm0')}; i.info['load'] = True
        elif '_load' in b:
            i.wr = R(0); i.rd = allr(1); i.info['load'] = True
            if 'd16' in b: i.rd |= R(0)
        elif '_store' in b:
            i.rd = allr(0); i.info['load'] = False
            data = R(0) if b.startswith('buffer_') else R(1)
            if 'dwordx4' in b or 'dwordx3' in b: i.info['wide'] = data
        elif '_atomic' in b:
            ret = ('sc0' in toks) or ('glc' in toks)
            if ret and b.startswith('global_'):
                i.wr = R(0); i.rd = allr(1); i.info['load'] = True
            else:
                assert not ret
                i.rd = allr(0); i.info['load'] = False
        else:
            raise ValueError(mn)
    elif b.startswith('s_'):
        if b.startswith('s_load') or b.startswith('s_buffer_load') or b in ('s_memtime', 's_memrealtime'):
            i.cls = 'smem'; i.wr = R(0); i.rd = allr(1)
        elif b == 's_waitcnt': i.cls = 'wait'
        elif b == 's_nop': i.cls = 'nop'; i.info['n'] = int(ops[0], 0) + 1
        elif b in ('s_branch',) or b.startswith('s_cbranch'):
            i.cls = 'branch'; i.info['target'] = ops[0]; i.info['uncond'] = (b == 's_branch')
            if 'vcc' in b: i.rd = set(VCC)
            if 'exec' in b: i.rd = set(EXEC)
        elif b == 's_endpgm': i.cls = 'end'
        elif b in ('s_barrier', 's_setprio', 's_sleep', 's_sethalt', 's_setreg_imm32_b32'): i.cls = 'salu'
        elif b.startswith('s_cmp') or b.startswith('s_bitcmp'):
            i.cls = 'salu'; i.rd = allr(0)
        elif 'saveexec' in b:
            i.cls = 'salu'; i.wr = R(0) | EXEC; i.rd = allr(1) | EXEC
        elif b == 's_getpc_b64':
            i.cls = 'salu'; i.wr = R(0)
        else:
            i.cls = 'salu'; i.wr = R(0); i.rd = allr(1)
            if b in ('s_addk_i32', 's_mulk_i32', 's_bitset0_b32', 's_bitset1_b32', 's_cmov_b32', 's_cmovk_i32'): i.rd |= R(0)
    else:
        raise ValueError('unknown insn: ' + t)
    return i

class Asm:
    def __init__(self):
        self.items = []
    def __call__(self, text, tag=None):
        for ln in text.split('\n'):
            ln = ln.strip()
            if not ln or ln.startswith(';'): continue
            if ln.endswith(':'):
                self.items.append(Ins('label', ln[:-1]))
            else:
                self.items.append(parse(Ins('ins', ln, tag)))
    def label(self, n): self.items.append(Ins('label', n))
    def raw(self, t): self.items.append(Ins('raw', t))
    def comment(self, t): self.items.append(Ins('raw', '; ' + t))
    def wait_tag(self, *tags): self.items.append(Ins('pseudo', 'wait_tag', tag=tuple(tags)))
    def wait_lgkm(self): self.items.append(Ins('pseudo', 'wait_lgkm'))
    def wait_vm(self): self.items.append(Ins('pseudo', 'wait_vm'))
    def barrier(self, *tags):
        if tags: self.wait_tag(*tags)
        self.wait_lgkm()
        self('s_barrier')

VM_MAX = 63; LGKM_MAX = 15

def _merge(a, b):
    if a is None: return b
    if b is None: return a
    out = {}
    for c in ('vm', 'lg'):
        d = dict(a[c])
        for k, (age, e) in b[c].items():
            if k in d: d[k] = (min(d[k][0], age), e)
            else: d[k] = (age, e)
        out[c] = d
    return out

def wait_pass(items):
    out = []
    st = {'vm': {}, 'lg': {}}
    saved = {}
    seen_labels = set()
    nid = [0]
    def emit_wait(vm=None, lg=None):
        parts = []
        if vm is not None:
            vm = min(vm, VM_MAX); parts.append(f'vmcnt({vm})')
            st['vm'] = {k: v for k, v in st['vm'].items() if v[0] < vm}
        if lg is not None:
            lg = min(lg, LGKM_MAX); parts.append(f'lgkmcnt({lg})')
            st['lg'] = {k: v for k, v in st['lg'].items() if v[0] < lg}
        if parts:
            out.append(parse(Ins('ins', 's_waitcnt ' + ' '.join(parts))))
    def issue(c, e):
        nid[0] += 1
        st[c] = {k: (a + 1, x) for k, (a, x) in st[c].items()}
        st[c][nid[0]] = (0, e)
    for i in items:
        if i.kind == 'label':
            seen_labels.add(i.text)
            st = _merge(st, saved.pop(i.text, None))
            if st is None: st = {'vm': {}, 'lg': {}}
            out.append(i); continue
        if i.kind == 'raw':
            out.append(i); continue
        assert st is not None, 'unreachable code: ' + i.text
        if i.kind == 'pseudo':
            if i.text == 'wait_tag':
                ages = [a for a, e in st['vm'].values() if e['tag'] in i.tag]
                if ages: emit_wait(vm=min(ages))
            elif i.text == 'wait_lgkm':
                if st['lg']: emit_wait(lg=0)
            elif i.text == 'wait_vm':
                if st['vm']: emit_wait(vm=0)
            continue
        if i.cls == 'wait':
            m = re.search(r'vmcnt\((\d+)\)', i.text)
            if m: st['vm'] = {k: v for k, v in st['vm'].items() if v[0] < int(m.group(1))}
            m = re.search(r'lgkmcnt\((\d+)\)', i.text)
            if m: st['lg'] = {k: v for k, v in st['lg'].items() if v[0] < int(m.group(1))}
            out.append(i); continue
        touched = i.rd | i.wr
        vm = None; lg = None
        ages = [a for a, e in st['vm'].values() if e['dst'] & touched]
        if ages: vm = min(ages)
        ages = [a for a, e in st['lg'].values() if e['dst'] & touched]
        if ages:
            lg = min(ages)
            if any(e['smem'] for a, e in st['lg'].values()): lg = 0
        if vm is not None or lg is not None: emit_wait(vm, lg)
        out.append(i)
        if i.cls == 'vmem':
            issue('vm', {'dst': set(i.wr), 'tag': i.tag})
        elif i.cls == 'ds':
            issue('lg', {'dst': set(i.wr), 'smem': False, 'tag': i.tag})
        elif i.cls == 'smem':
            issue('lg', {'dst': set(i.wr), 'smem': True, 'tag': i.tag})
            if len(i.wr) >= 2: issue('lg', {'dst': set(i.wr), 'smem': True, 'tag': i.tag})
        elif i.cls == 'branch':
            t = i.info['target']
            assert t not in seen_labels, 'backward branch ' + t
            cp = {'vm': dict(st['vm']), 'lg': dict(st['lg'])}
            saved[t] = _merge(saved.get(t), cp)
            if i.info['uncond']: st = None
        elif i.cls == 'end':
            st = None
    assert not saved, saved.keys()
    return out

def _is_sgpr(r): return r[0] == 's'
def _vg(s): return {r for r in s if r[0] in 'va'}
def _sg(s): return {r for r in s if r[0] == 's'}

def need_ws(p, c):
    n = 0
    pc, cc = p.cls, c.cls
    if pc == 'valu':
        pw = _vg(p.wr); ps = _sg(p.wr)
        if cc == 'mfma':
            if pw & c.rd: n = max(n, 3 if p.info['dot'] else 2)
            if ps & EXEC: n = max(n, 4)
        if cc == 'valu':
            if pw & c.rd:
                if p.info['trans'] and not c.info['trans']: n = max(n, 1)
                if c.info['perm'] or c.info['dpp']: n = max(n, 2)
                if c.info['rl']: n = max(n, 1)
                if p.info['bitpos']: n = max(n, 1)
            if p.info['dot'] and (pw & (c.rd | c.wr)):
                same = (c.info['dot'] == p.info['dot'])
                if same and (pw & c.wr) and len(c.ops) >= 3 and not ((regs_of(c.ops[1]) | regs_of(c.ops[2])) & pw): pass
                else: n = max(n, 3)
            if p.info['bitpos'] and (pw & c.wr): n = max(n, 1)
            if ps & c.rd: n = max(n, 2)
            if ps & c.info['lanesel']: n = max(n, 4)
            if ps & EXEC:
                if c.info['dpp']: n = max(n, 5)
                if c.info['rl'] or c.info['perm']: n = max(n, 4)
        if cc in ('vmem', 'ds'):
            if ps & c.rd: n = max(n, 5)
            if p.info['dot'] and (pw & c.rd): n = max(n, 3)
            if p.info['trans'] and (pw & c.rd): n = max(n, 1)
        if cc == 'branch':
            if ps & c.rd: n = max(n, 5)
        if cc in ('salu', 'smem'):
            if ps & c.rd: n = max(n, 2)
    elif pc == 'mfma':
        P = p.info['passes']; D = p.info['D']
        big = {4: 8, 8: 12}[P]; ov = {4: 6, 8: 10}[P]; war = {4: 3, 8: 7}[P]
        if cc == 'mfma':
            if D & c.info['AB']: n = max(n, big)
            if D & c.info['C']:
                if not (c.info['C'] == D and c.info['passes'] == P): n = max(n, ov)
            if (D & c.info['D']) and not (c.info['C'] == D and c.info['passes'] == P): n = max(n, big)
        elif cc in ('valu', 'vmem', 'ds'):
            if D & (c.rd | c.wr): n = max(n, big)
            if cc == 'valu' and (p.info['C'] & c.wr): n = max(n, war)
            if cc in ('vmem', 'ds') and (p.info['C'] & c.wr): n = max(n, war)
    elif pc == 'vmem':
        w = p.info.get('wide')
        if w and (w & c.wr): n = max(n, 2)
    elif pc == 'salu':
        if ('s', 'm0') in p.wr and cc == 'vmem' and c.info.get('lds'): n = max(n, 1)
        if ('s', 'm0') in p.wr and cc == 'ds' and ('addtid' in c.mn): n = max(n, 1)
    return n

WINDOW = 21
def hazard_pass(items):
    out = []
    hist = []
    saved = {}
    nops = 0
    def adv(h, k): return [(a + k, x) for a, x in h if a + k < WINDOW]
    for i in items:
        if i.kind == 'label':
            s = saved.pop(i.text, None)
            if hist is None: hist = s if s is not None else []
            elif s is not None: hist = hist + s
            out.append(i); continue
        if i.kind == 'raw':
            out.append(i); continue
        need = 0
        for a, p in hist:
            n = need_ws(p, i)
            if n > a: need = max(need, n - a)
        while need > 0:
            k = min(need, 8)
            out.append(parse(Ins('ins', f's_nop {k - 1}')))
            hist = adv(hist, k); need -= k; nops += k
        out.append(i)
        step = i.info['n'] if i.cls == 'nop' else 1
        hist = adv(hist, step)
        if i.cls in ('valu', 'mfma', 'vmem', 'salu'): hist.append((0, i))
        if i.cls == 'branch':
            t = i.info['target']
            saved[t] = (saved.get(t) or []) + list(hist)
            if i.info['uncond']: hist = None
        elif i.cls == 'end':
            hist = None
    return out, nops

def finalize(asm, verbose=False):
    items = wait_pass(asm.items)
    items, nops = hazard_pass(items)
    lines = []
    n = 0
    for i in items:
        if i.kind == 'label': lines.append(i.text + ':')
        elif i.kind == 'raw': lines.append(i.text)
        else: lines.append('  ' + i.text); n += 1
    if verbose: print(f'  insns={n} hazard_nop_states={nops}')
    return '\n'.join(lines) + '\n'

class Regs:
    def __init__(self, start=1, limit=256):
        self.n = start; self.limit = limit; self.hi = start
    def v(self, cnt=1, align=None):
        if align is None: align = 4 if cnt >= 4 else 2 if cnt == 2 else 1
        b = (self.n + align - 1) // align * align
        self.n = b + cnt
        self.hi = max(self.hi, self.n)
        assert self.n <= self.limit, f'out of regs {self.n}'
        return b
    def mark(self): return self.n
    def release(self, m): self.n = m

def vr(b, n=1): return f'v{b}' if n == 1 else f'v[{b}:{b + n - 1}]'
def sr(b, n=1): return f's{b}' if n == 1 else f's[{b}:{b + n - 1}]'
```

```python
from tile import *
RS_OFF = 131072

def gemm1_main(k, Uin):
    k('s_and_b32 s20, s2, 7\ns_lshr_b32 s21, s2, 3')
    k('s_and_b32 s22, s20, 3\ns_lshl_b32 s22, s22, 2\ns_and_b32 s23, s21, 3\ns_add_u32 s22, s22, s23')
    k('s_lshr_b32 s23, s20, 2\ns_mul_i32 s23, s23, 7\ns_lshr_b32 s24, s21, 2\ns_add_u32 s23, s23, s24')
    srd(k, 12, 4, Uin, USZ)
    srd(k, 8, 4, W13F, W13F_SZ)
    srd(k, 16, 4, HB, HB_SZ)
    k('s_lshl_b32 s24, s3, 14\ns_lshl_b32 s25, s22, 9\ns_add_u32 s24, s24, s25')
    k('s_lshl_b32 s25, s23, 2\ns_add_u32 s25, s25, s3')
    k('s_lshl_b32 s26, s25, 16\ns_add_u32 s27, s26, 32768')
    R = Regs()
    C = tile_main(k, R, 'upair', 2, True, sSH=12, s_shoff=24, sPV=8, s_pv=26, s_w=3, PF=8, stats='u', s_tmp=28, slot_rot=True)
    st = C.st; tA, tB = C.tA, C.tB
    k(f'v_add_f32 v{st[0]}, v{st[0]}, v{st[1]}')
    half_sum(k, st[0], tA)
    k(f'v_mov_b32 v{tB}, {hex(T.f32(1e-5))}')
    k(f's_mov_b32 s30, {hex(T.f32(1/512))}')
    k(f'v_fma_f32 v{st[0]}, v{st[0]}, s30, v{tB}')
    k(f'v_rsq_f32 v{st[0]}, v{st[0]}')
    k(f'v_lshlrev_b32 v{tA}, 2, v{C.vl31}')
    k(f's_lshl_b32 s30, s3, 7\ns_add_u32 s30, s30, {RS_OFF}')
    k(f'v_add_u32 v{tB}, s30, v{tA}')
    k(f'ds_write_b32 v{tB}, v{st[0]}')
    k.barrier()
    rs = R.v(4); nr = R.v(4)
    for t in range(4):
        k(f's_add_u32 s30, s3, {t}\ns_and_b32 s30, s30, 3\ns_lshl_b32 s30, s30, 7\ns_add_u32 s30, s30, {RS_OFF}')
        k(f'v_add_u32 v{tB}, s30, v{tA}')
        k(f'ds_read_b32 v{rs+t}, v{tB}')
    for t in range(4):
        k(f'v_mul_f32 v{nr+t}, {hex(T.f32(-1.4426950408889634))}, v{rs+t}')
        k(f'v_mul_f32 v{rs+t}, v{rs+t}, v{rs+t}')
    e = C.ring[0][0]
    k('s_lshl_b32 s31, s25, 11')
    for t in range(4):
        k(f's_add_u32 s30, s3, {t}\ns_and_b32 s30, s30, 3\ns_lshl_b32 s33, s22, 2\ns_add_u32 s30, s30, s33\ns_mul_i32 s30, s30, 114688\ns_add_u32 s30, s30, s31')
        g = C.acc[0][t]; u = C.acc[1][t]
        ee = e + 16 * (t & 1); o = e + 32 + 8 * (t & 1)
        for r in range(16): k(f'v_mul_f32 v{ee+r}, v{g+r}, v{nr+t}')
        for r in range(16): k(f'v_exp_f32 v{ee+r}, v{ee+r}')
        for r in range(16): k(f'v_mul_f32 v{g+r}, v{g+r}, v{u+r}')
        for r in range(16): k(f'v_add_f32 v{ee+r}, 1.0, v{ee+r}')
        for r in range(16): k(f'v_rcp_f32 v{ee+r}, v{ee+r}')
        for r in range(16): k(f'v_mul_f32 v{g+r}, v{g+r}, v{rs+t}')
        for r in range(16): k(f'v_mul_f32 v{g+r}, v{g+r}, v{ee+r}')
        for q in range(8): k(f'v_cvt_pk_bf16_f32 v{o+q}, v{g+2*q}, v{g+2*q+1}')
        k(f'buffer_store_dwordx4 {vr(o,4)}, v{C.vl16}, s[16:19], s30 offen')
        k(f'buffer_store_dwordx4 {vr(o+4,4)}, v{C.vl16}, s[16:19], s30 offen offset:1024')
    k('s_endpgm')
    return R.hi

def w2p_job(k, base_id):
    k(f's_sub_u32 s20, s2, {base_id}\ns_lshr_b32 s22, s20, 1\ns_and_b32 s23, s20, 1')
    k('s_load_dwordx2 s[6:7], s[0:1], 48')
    table_base(k, 34, 'RF')
    srd(k, 8, 34, 0, 0x80000)
    srd(k, 12, 6, 0, 1792 * 1024)
    srd(k, 16, 4, W2PF, W2F_SZ)
    k('s_lshl_b32 s24, s22, 7\ns_lshl_b32 s25, s3, 5\ns_add_u32 s24, s24, s25\ns_lshl_b32 s24, s24, 10')
    k('s_lshl_b32 s25, s23, 3\ns_lshl_b32 s26, s3, 1\ns_add_u32 s25, s25, s26')
    k('s_lshl_b32 s26, s25, 15\ns_add_u32 s27, s26, 32768')
    R = Regs()
    C = tile_main(k, R, 'rows', 2, False, sSH=12, s_shoff=24, sPV=8, s_pv=26, s_w=3, PF=8, s_tmp=28)
    tmp = C.ring[0][0]
    k('s_mul_i32 s30, s25, 114688\ns_lshl_b32 s31, s22, 13\ns_add_u32 s30, s30, s31')
    for p in range(2):
        for t in range(4):
            a = C.acc[p][t]; o = tmp + 8 * (t & 1)
            k(f's_add_u32 s31, s30, {p * 114688 + t * 2048}')
            for q in range(8): k(f'v_cvt_pk_bf16_f32 v{o+q}, v{a+2*q}, v{a+2*q+1}')
            k(f'buffer_store_dwordx4 {vr(o,4)}, v{C.vl16}, s[16:19], s31 offen')
            k(f'buffer_store_dwordx4 {vr(o+4,4)}, v{C.vl16}, s[16:19], s31 offen offset:1024')
    k('s_endpgm')
    return R.hi

def x3_job(k, base_id, Uin):
    k(f's_sub_u32 s20, s2, {base_id}\ns_lshr_b32 s22, s20, 1\ns_and_b32 s23, s20, 1')
    table_base(k, 34, 'RT')
    srd(k, 8, 34, 0, 0x80000)
    srd(k, 12, 4, Uin, USZ)
    srd(k, 16, 4, X3, 0x200000)
    k('s_lshl_b32 s24, s3, 14\ns_lshl_b32 s25, s22, 9\ns_add_u32 s24, s24, s25')
    k('s_lshl_b32 s25, s23, 3\ns_lshl_b32 s26, s3, 1\ns_add_u32 s25, s25, s26')
    k('s_lshl_b32 s26, s25, 15\ns_add_u32 s27, s26, 32768')
    R = Regs()
    C = tile_main(k, R, 'upair', 2, True, sSH=12, s_shoff=24, sPV=8, s_pv=26, s_w=3, PF=8, s_tmp=28)
    tmp = C.ring[0][0]
    k('s_lshl_b32 s30, s25, 17\ns_lshl_b32 s31, s22, 13\ns_add_u32 s30, s30, s31')
    for p in range(2):
        for t in range(4):
            a = C.acc[p][t]; o = tmp + 8 * (t & 1)
            k(f's_add_u32 s31, s30, {p * 131072 + t * 2048}')
            for q in range(8): k(f'v_cvt_pk_bf16_f32 v{o+q}, v{a+2*q}, v{a+2*q+1}')
            k(f'buffer_store_dwordx4 {vr(o,4)}, v{C.vl16}, s[16:19], s31 offen')
            k(f'buffer_store_dwordx4 {vr(o+4,4)}, v{C.vl16}, s[16:19], s31 offen offset:1024')
    k('s_endpgm')
    return R.hi

def gemm1_kernel(name, Uin, side):
    k = Asm()
    Lend, Ls = uid('ge'), uid('gs')
    n = 224 + (28 if side == 'w2p' else 32)
    k(f's_cmp_ge_u32 s2, {n}\ns_cbranch_scc1 {Lend}')
    k('s_load_dwordx2 s[4:5], s[0:1], 72')
    wave_id(k, 3, 1)
    k(f's_cmp_ge_u32 s2, 224\ns_cbranch_scc1 {Ls}')
    hi = gemm1_main(k, Uin)
    k.label(Ls)
    hi2 = w2p_job(k, 224) if side == 'w2p' else x3_job(k, 224, Uin)
    k.label(Lend)
    k('s_endpgm')
    print('  vgprs', hi, hi2)
    return khead(name) + finalize(k, True) + kdesc(name, max(hi, hi2))
```

```python
from tile import *

def gemm2_kernel(name, final, RING=10):
    k = Asm()
    Lend = uid('he')
    k(f's_cmp_ge_u32 s2, 256\ns_cbranch_scc1 {Lend}')
    k('s_load_dwordx2 s[4:5], s[0:1], 72')
    if final: k('s_load_dwordx2 s[6:7], s[0:1], 56')
    wave_id(k, 3, 1)
    k('s_and_b32 s20, s2, 7\ns_lshr_b32 s21, s2, 3')
    k('s_and_b32 s22, s20, 3\ns_lshl_b32 s22, s22, 3\ns_and_b32 s23, s21, 7\ns_add_u32 s22, s22, s23')
    k('s_lshr_b32 s23, s20, 2\ns_lshl_b32 s23, s23, 2\ns_lshr_b32 s24, s21, 3\ns_add_u32 s23, s23, s24')
    srd(k, 8, 4, W2F if final else W2PF, W2F_SZ)
    srd(k, 12, 4, HB, HB_SZ)
    k('s_mul_i32 s24, s3, 28672')
    k('s_mul_i32 s26, s23, 229376\ns_add_u32 s26, s26, s24\ns_add_u32 s27, s26, 114688')
    k('s_mul_i32 s28, s22, 229376\ns_add_u32 s28, s28, s24\ns_add_u32 s29, s28, 114688')
    R = Regs()
    vlane = R.v(); vl16 = R.v(); vl31 = R.v(); vhalf = R.v(); tA = R.v(); tB = R.v()
    k(f'v_and_b32 v{vlane}, 63, v0')
    k(f'v_lshlrev_b32 v{vl16}, 4, v{vlane}')
    acc = [[R.v(16) for b in range(2)] for a in range(2)]
    ring = [[R.v(4) for q in range(4)] for _ in range(RING)]
    def loads(ks):
        out = []
        for q in range(4):
            def f(q=q):
                s = 26 + q
                if ks and ks % 4 == 0: k(f's_add_u32 s{s}, s{s}, 4096')
                k(f'buffer_load_dwordx4 {vr(ring[ks % RING][q], 4)}, v{vl16}, s[{8 if q < 2 else 12}:{11 if q < 2 else 15}], s{s} offen offset:{(ks & 3) * 1024}')
            out.append(f)
        return out
    for ks in range(RING):
        for f in loads(ks): f()
    k(f'v_and_b32 v{vl31}, 31, v{vlane}')
    k(f'v_lshrrev_b32 v{vhalf}, 5, v{vlane}')
    k('s_lshr_b32 s30, s3, 1\ns_and_b32 s31, s3, 1')
    k('s_lshl_b32 s32, s23, 1\ns_add_u32 s32, s32, s30')
    k('s_lshl_b32 s33, s22, 1\ns_add_u32 s33, s33, s31')
    res = R.v(8)
    if not final:
        srd(k, 16, 4, U1, USZ)
        srd(k, 36, 4, U2, USZ)
        srd(k, 40, 4, SS2, 8192)
        voff = R.v()
        k(f'v_lshlrev_b32 v{voff}, 2, v{vl31}')
        k(f'v_lshl_or_b32 v{voff}, v{vhalf}, 14, v{voff}')
        k('s_lshl_b32 s34, s32, 17\ns_lshl_b32 s35, s33, 7\ns_add_u32 s34, s34, s35')
        crow = [0, 1, 4, 5, 8, 9, 12, 13]
        for q in range(8): k(f's_add_u32 s{44+q}, s34, {crow[q]*8192}')
        def resload():
            for q in range(8): k(f'buffer_load_dword v{res+q}, v{voff}, s[16:19], s{44+q} offen')
    else:
        srd(k, 16, 4, X3, 0x200000)
        srd(k, 36, 6, 0, 0x200000)
        k('s_lshl_b32 s34, s32, 17\ns_lshl_b32 s35, s33, 11\ns_add_u32 s34, s34, s35')
        def resload():
            k(f'buffer_load_dwordx4 {vr(res,4)}, v{vl16}, s[16:19], s34 offen')
            k(f'buffer_load_dwordx4 {vr(res+4,4)}, v{vl16}, s[16:19], s34 offen offset:1024')
    NK = 28
    for ks in range(NK):
        r = ring[ks % RING]
        mf = []
        for a in range(2):
            for b in range(2):
                c = '0' if ks == 0 else vr(acc[a][b], 16)
                mf.append(f'v_mfma_f32_32x32x16_bf16 {vr(acc[a][b],16)}, {vr(r[a],4)}, {vr(r[2+b],4)}, {c}')
        fill = []
        if ks >= 1 and ks - 1 + RING < NK: fill = loads(ks - 1 + RING)
        if ks == NK - RING + 1: fill = fill + [resload]
        interleave(k, mf, fill)
    k(f'v_mov_b32 v{tA}, v{vl16}')
    Lq = [uid('rq') for _ in range(4)]
    Lred = uid('rd')
    for w in range(4):
        if w < 3: k(f's_cmp_lg_u32 s3, {w}\ns_cbranch_scc1 {Lq[w+1]}')
        for dq in range(1, 4):
            q = (w + dq) & 3
            slot = (w - q - 1) & 3
            a = acc[q >> 1][q & 1]
            for j in range(4):
                off = (q * 3 + slot) * 4096 + j * 1024
                k(f'ds_write_b128 v{vl16}, {vr(a+4*j,4)} offset:{off}')
        own = acc[w >> 1][w & 1]
        if own != acc[0][0]:
            pass
        k.barrier()
        tgt = ring[0][0]
        for slot in range(3):
            for j in range(4):
                k(f'ds_read_b128 {vr(tgt + slot*16 + 4*j,4)}, v{vl16} offset:{(w*3+slot)*4096 + j*1024}')
        fin = ring[3][0]
        for r in range(16): k(f'v_add_f32 v{fin+r}, v{own+r}, v{tgt+r}')
        for r in range(16): k(f'v_add_f32 v{tgt+16+r}, v{tgt+16+r}, v{tgt+32+r}')
        for r in range(16): k(f'v_add_f32 v{fin+r}, v{fin+r}, v{tgt+16+r}')
        if w < 3:
            k(f's_branch {Lred}')
            k.label(Lq[w + 1])
    k.label(Lred)
    fin = ring[3][0]; o = ring[8][0]; un = ring[4][0]
    assert RING >= 10
    if not final:
        for q in range(8):
            k(f'v_lshlrev_b32 v{un+2*q}, 16, v{res+q}')
            k(f'v_and_b32 v{un+2*q+1}, 0xffff0000, v{res+q}')
        for r in range(16): k(f'v_add_f32 v{fin+r}, v{fin+r}, v{un+r}')
        for q in range(8):
            k(f'v_cvt_pk_bf16_f32 v{o+q}, v{fin+2*q}, v{fin+2*q+1}')
        for q in range(8):
            k(f'buffer_store_dword v{o+q}, v{voff}, s[36:39], s{44+q} offen')
        k('s_cmp_eq_u32 s32, 0\ns_cselect_b32 s52, -1, 0\ns_mov_b32 s53, 0')
        k(f'v_cndmask_b32 v{fin+1}, v{fin+1}, 0, s[52:53]') if False else None
        k(f'v_mov_b32 v{tB}, 0')
        k(f'v_cndmask_b32 v{fin+1}, v{fin+1}, v{tB}, s[52:53]')
        k(f'v_mul_f32 v{tA}, v{fin}, v{fin}')
        k(f'v_mul_f32 v{tB}, v{fin+1}, v{fin+1}')
        for r in range(2, 16, 2):
            k(f'v_fmac_f32 v{tA}, v{fin+r}, v{fin+r}')
            k(f'v_fmac_f32 v{tB}, v{fin+r+1}, v{fin+r+1}')
        k(f'v_add_f32 v{tA}, v{tA}, v{tB}')
        half_sum(k, tA, tB)
        k(f'v_lshlrev_b32 v{tB}, 2, v{vl31}')
        k('s_lshl_b32 s35, s33, 7')
        k('s_mov_b32 exec_lo, -1\ns_mov_b32 exec_hi, 0')
        k(f'buffer_atomic_add_f32 v{tA}, v{tB}, s[40:43], s35 offen')
    else:
        for q in range(8):
            k(f'v_lshlrev_b32 v{un+2*q}, 16, v{res+q}')
            k(f'v_and_b32 v{un+2*q+1}, 0xffff0000, v{res+q}')
        for r in range(16): k(f'v_add_f32 v{fin+r}, v{fin+r}, v{un+r}')
        for q in range(8):
            k(f'v_cvt_pk_bf16_f32 v{o+q}, v{fin+2*q}, v{fin+2*q+1}')
        for h in range(2):
            k(f'v_permlane32_swap_b32 v{o+4*h}, v{o+4*h+2}')
            k(f'v_permlane32_swap_b32 v{o+4*h+1}, v{o+4*h+3}')
        k(f'v_lshlrev_b32 v{tA}, 10, v{vl31}')
        k(f'v_lshl_or_b32 v{tA}, v{vhalf}, 4, v{tA}')
        k('s_lshl_b32 s34, s33, 15\ns_lshl_b32 s35, s32, 6\ns_add_u32 s34, s34, s35')
        k(f'buffer_store_dwordx4 {vr(o,4)}, v{tA}, s[36:39], s34 offen')
        k(f'buffer_store_dwordx4 {vr(o+4,4)}, v{tA}, s[36:39], s34 offen offset:32')
    k.label(Lend)
    k('s_endpgm')
    print('  vgprs', R.hi)
    return khead(name) + finalize(k, True) + kdesc(name, R.hi)
```

```python
from tile import *

def q0(name):
    k = Asm()
    La, Lb, Lp, Lend = uid('q0a'), uid('q0b'), uid('q0p'), uid('q0e')
    k(f's_cmp_ge_u32 s2, 240\ns_cbranch_scc1 {Lend}')
    k('s_load_dwordx2 s[4:5], s[0:1], 72')
    wave_id(k, 3, 1)
    k(f's_cmp_ge_u32 s2, 176\ns_cbranch_scc1 {Lp}')
    table_base(k, 6, 'RF')
    srd(k, 8, 6, 0, 0x80000)
    k(f's_cmp_ge_u32 s2, 64\ns_cbranch_scc1 {Lb}')
    k('s_load_dwordx2 s[6:7], s[0:1], 0')
    k('s_and_b32 s20, s2, 7\ns_lshl_b32 s20, s20, 1\ns_bfe_u32 s21, s2, 0x10003\ns_or_b32 s20, s20, s21')
    k('s_lshr_b32 s21, s2, 4')
    srd(k, 12, 6, 0, 0x200000)
    srd(k, 16, 4, U0, USZ)
    k('s_add_u32 s22, s3, s21\ns_and_b32 s22, s22, 3\ns_lshl_b32 s22, s22, 5\ns_lshl_b32 s23, s20, 7\ns_add_u32 s22, s22, s23\ns_lshl_b32 s22, s22, 10')
    k('s_lshl_b32 s24, s21, 2\ns_add_u32 s24, s24, s3')
    k('s_lshl_b32 s25, s24, 15')
    k('s_mov_b32 s26, 0x3f803f80')
    R = Regs()
    C = tile_main(k, R, 'rows', 1, True, sSH=12, s_shoff=22, sPV=8, s_pv=25, s_w=3, PF=8, stats='x', s_tmp=28, s_ones=26)
    vs = [R.v() for t in range(4)]
    tA, tB = C.tA, C.tB
    k(f'v_lshlrev_b32 v{tA}, 2, v{C.vl31}')
    k(f'v_lshl_or_b32 v{tA}, v{C.vhalf}, 14, v{tA}')
    for t in range(4):
        k(f's_add_u32 s30, s21, {t}\ns_and_b32 s30, s30, 3\ns_lshl_b32 s30, s30, 7')
        k(f'v_add_u32 v{vs[t]}, s30, v{tA}')
    k('s_lshl_b32 s30, s24, 17\ns_lshl_b32 s31, s20, 9\ns_add_u32 s30, s30, s31')
    crow = [0, 1, 4, 5, 8, 9, 12, 13]
    for q in range(8): k(f's_add_u32 s{32 + q}, s30, {crow[q] * 8192}')
    tmp = R.v(8)
    for t in range(4):
        a = C.acc[0][t]
        for q in range(8):
            k(f'v_cvt_pk_bf16_f32 v{tmp + q}, v{a + 2 * q}, v{a + 2 * q + 1}')
        for q in range(8):
            k(f'buffer_store_dword v{tmp + q}, v{vs[t]}, s[16:19], s{32 + q} offen')
    st = C.st
    half_sum(k, st[0], tA); half_sum(k, st[1], tB)
    k(f'v_mul_f32 v{st[1]}, v{st[1]}, v{st[1]}')
    k(f's_mov_b32 s30, {hex(T.f32(-1 / 512))}')
    k(f'v_fma_f32 v{st[0]}, v{st[1]}, s30, v{st[0]}')
    k(f's_cmp_lg_u32 s3, 0\ns_cbranch_scc1 {Lend}')
    srd(k, 12, 4, SS0, 0x4000)
    k('s_lshl_b32 s30, s20, 9\ns_lshl_b32 s31, s21, 7\ns_add_u32 s30, s30, s31')
    k(f'v_lshlrev_b32 v{tA}, 2, v{C.vl31}')
    k(f'v_mov_b32 v{tB}, 0')
    k('s_add_u32 s31, s30, 0x2000')
    k('s_mov_b32 exec_lo, -1\ns_mov_b32 exec_hi, 0')
    k(f'buffer_store_dword v{st[0]}, v{tA}, s[12:15], s30 offen')
    k(f'buffer_store_dword v{tB}, v{tA}, s[12:15], s31 offen')
    k('s_endpgm')
    k.label(Lb)
    k('s_sub_u32 s20, s2, 64\ns_and_b32 s21, s20, 7\ns_lshr_b32 s22, s20, 3')
    k('s_lshr_b32 s23, s22, 2\ns_lshl_b32 s23, s23, 3\ns_add_u32 s23, s23, s21\ns_and_b32 s24, s22, 3')
    k('s_lshr_b32 s26, s21, 1\ns_add_u32 s26, s26, 24\ns_and_b32 s27, s21, 1\ns_lshl_b32 s27, s27, 1\ns_and_b32 s30, s22, 1\ns_or_b32 s27, s27, s30')
    k('s_cmp_ge_u32 s22, 12\ns_cselect_b32 s23, s26, s23\ns_cselect_b32 s24, s27, s24')
    k('s_cmp_ge_u32 s23, 14\ns_cselect_b32 s26, 1, 0\ns_cselect_b32 s27, 14, 0\ns_sub_u32 s23, s23, s27')
    k('s_lshl_b32 s27, s26, 3\ns_add_u32 s27, s27, 32')
    k('s_load_dwordx2 s[6:7], s[0:1], 32\ns_load_dwordx2 s[12:13], s[0:1], 40')
    k('s_waitcnt lgkmcnt(0)')
    k('s_cmp_eq_u32 s26, 0\ns_cselect_b32 s6, s6, s12\ns_cselect_b32 s7, s7, s13')
    srd(k, 12, 6, 0, 512 * 3584)
    srd(k, 16, 4, W13F, W13F_SZ)
    k('s_mul_i32 s22, s3, 14336\ns_lshl_b32 s21, s23, 8\ns_add_u32 s22, s22, s21')
    k('s_lshl_b32 s27, s24, 2\ns_add_u32 s27, s27, s3')
    k('s_lshl_b32 s25, s27, 15')
    R = Regs()
    C = tile_main(k, R, 'cols', 1, True, sSH=12, s_shoff=22, sPV=8, s_pv=25, s_w=3, PF=8, s_tmp=28, sh_rowstride=3584)
    k('s_cmp_eq_u32 s27, 0\ns_cselect_b32 s30, -1, 0\ns_mov_b32 s31, 0')
    k('s_mov_b64 exec, s[30:31]')
    for t in range(4): k(f'v_mov_b32 v{C.acc[0][t] + 1}, 0')
    k('s_mov_b64 exec, -1')
    k('s_lshl_b32 s30, s23, 18\ns_lshl_b32 s31, s26, 15\ns_add_u32 s30, s30, s31\ns_lshl_b32 s31, s27, 11\ns_add_u32 s30, s30, s31')
    tmp = R.v(8)
    for t in range(4):
        a = C.acc[0][t]
        k(f's_add_u32 s31, s30, {t * 65536}')
        for q in range(8):
            k(f'v_cvt_pk_bf16_f32 v{tmp + q}, v{a + 2 * q}, v{a + 2 * q + 1}')
        k(f'buffer_store_dwordx4 {vr(tmp, 4)}, v{C.vl16}, s[16:19], s31 offen')
        k(f'buffer_store_dwordx4 {vr(tmp + 4, 4)}, v{C.vl16}, s[16:19], s31 offen offset:1024')
    k('s_endpgm')
    k.label(Lp)
    k('s_load_dwordx2 s[6:7], s[0:1], 8\ns_load_dwordx2 s[12:13], s[0:1], 16')
    k('s_sub_u32 s20, s2, 176\ns_and_b32 s21, s20, 3\ns_lshr_b32 s20, s20, 2')
    k('s_and_b32 s22, s20, 3\ns_bfe_u32 s23, s20, 0x10002\ns_lshr_b32 s24, s20, 3')
    srd(k, 8, 6, 0, 2048 * 514)
    srd(k, 16, 12, 0, 2048 * 514)
    srd(k, 12, 4, WP, 0x200000)
    R = Regs()
    vc = R.v(); vv = R.v(); vd = R.v(); t0 = R.v()
    k(f'v_and_b32 v{vc}, 63, v0')
    k('s_lshl_b32 s25, s21, 6')
    k(f'v_add_u32 v{vc}, s25, v{vc}')
    k(f'v_mov_b32 v{t0}, 256')
    k(f'v_cmp_eq_u32 vcc, 0, v{vc}')
    k(f'v_cndmask_b32 v{vv}, v{vc}, v{t0}, vcc')
    k(f'v_lshlrev_b32 v{vv}, 1, v{vv}')
    k(f'v_lshlrev_b32 v{vd}, 13, v{vc}')
    k('s_lshl_b32 s25, s22, 4\ns_lshl_b32 s26, s3, 2\ns_add_u32 s25, s25, s26\ns_lshl_b32 s26, s23, 10\ns_add_u32 s25, s25, s26\ns_lshl_b32 s26, s24, 9\ns_add_u32 s25, s25, s26')
    k('s_mul_i32 s25, s25, 514')
    k('s_lshl_b32 s26, s22, 6\ns_lshl_b32 s27, s24, 5\ns_add_u32 s26, s26, s27\ns_lshl_b32 s27, s3, 2\ns_add_u32 s26, s26, s27\ns_lshl_b32 s26, s26, 4\ns_lshl_b32 s27, s23, 12\ns_add_u32 s26, s26, s27')
    wr = R.v(32); wi = R.v(32)
    for gg in range(2):
        for aa in range(4):
            for r in range(4):
                n = (gg * 4 + aa) * 4 + r
                k(f's_add_u32 s28, s25, {(aa + 64 * (4 * gg + r)) * 514}')
                k(f'buffer_load_ushort v{wr + n}, v{vv}, s[8:11], s28 offen')
                k(f'buffer_load_ushort v{wi + n}, v{vv}, s[16:19], s28 offen')
    for gg in range(2):
        for aa in range(4):
            n = (gg * 4 + aa) * 4
            for r in range(4):
                k(f'v_lshl_or_b32 v{wr + n + r}, v{wi + n + r}, 16, v{wr + n + r}')
            k(f'buffer_store_dwordx4 {vr(wr + n, 4)}, v{vd}, s[12:15], s26 offen offset:{(16 * gg + aa) * 16}')
    k.label(Lend)
    k('s_endpgm')
    return khead(name) + finalize(k, True) + kdesc(name, 256)
```

```python
from common import *
import col, gemm1, gemm2
def kernels():
    ks = [('q1_kernel', 368, 24576, lambda n: col.col_kernel(n, U0, U1, SS0, True)),
          ('q2_kernel', 252, 131072 + 512, lambda n: gemm1.gemm1_kernel(n, U1, 'w2p')),
          ('q3_kernel', 256, 49152, lambda n: gemm2.gemm2_kernel(n, False)),
          ('q4_kernel', 256, 24576, lambda n: col.col_kernel(n, U2, U3, SS2, False)),
          ('q5_kernel', 256, 131072 + 512, lambda n: gemm1.gemm1_kernel(n, U3, 'x3')),
          ('q6_kernel', 256, 49152, lambda n: gemm2.gemm2_kernel(n, True)),
          ]
    return ks
```

```python
import math, struct
import numpy as np

def bf16(x):
    u = struct.unpack('<I', struct.pack('<f', x))[0]
    r = (u + 0x7fff + ((u >> 16) & 1)) >> 16
    return r & 0xffff
def f32(x): return struct.unpack('<I', struct.pack('<f', x))[0]

def cs(num, den):
    num %= den
    c = math.cos(2 * math.pi * num / den); s = math.sin(2 * math.pi * num / den)
    if abs(c) < 1e-12: c = 0.0
    if abs(s) < 1e-12: s = 0.0
    return c, s

CT_C64 = 0
CT_S64 = 8192
CT_C32 = 16384
CT_S32 = 18432
CT_TW1 = 20480
CT_TW3 = 36864
CT_SIZE = 53248

def col_tables():
    sh = []
    for fn in (0, 1):
        for ah in range(2):
            for nt in range(2):
                for ks in range(2):
                    for l in range(64):
                        n = 32 * ah + 16 * nt + (l & 15)
                        for i in range(8):
                            k = 32 * ks + 8 * (l >> 4) + i
                            sh.append(bf16(cs(n * k, 64)[fn]))
    for fn in (0, 1):
        for t in range(2):
            for l in range(64):
                m = 16 * t + (l & 15); g = l >> 4
                for i in range(8):
                    k = 16 * (i >> 2) + 4 * g + (i & 3)
                    sh.append(bf16(cs(m * k, 32)[fn]))
    words = [sh[2 * i] | (sh[2 * i + 1] << 16) for i in range(len(sh) // 2)]
    for w in range(4):
        bh, ah = w & 1, w >> 1
        for nt in range(2):
            for fn in (0, 1):
                for l in range(64):
                    for r in range(4):
                        words.append(f32(cs((32 * ah + 16 * nt + (l & 15)) * (16 * bh + 4 * (l >> 4) + r), 2048)[fn]))
    for w in range(4):
        for nt in range(2):
            for fn in (0, 1):
                for l in range(64):
                    for r in range(4):
                        words.append(f32(cs((16 * w + 4 * (l >> 4) + r) * (16 * nt + (l & 15)), 2048)[fn]))
    assert len(words) * 4 == CT_SIZE, len(words) * 4
    return words

def emit_words(name, words):
    out = [f'.p2align 8', f'{name}:']
    for i in range(0, len(words), 16):
        out.append('.long ' + ','.join(hex(x) for x in words[i:i + 16]))
    return '\n'.join(out) + '\n'

def R_matrix():
    D = 512
    R = np.zeros((D, D))
    d = np.arange(D)
    R[:, 0] = np.where(d % 2 == 0, 1.0, -1.0) / math.sqrt(D)
    R[:, 1] = 1 / math.sqrt(D)
    for c in range(1, 256):
        R[:, 2 * c] = math.sqrt(2 / D) * np.cos(2 * math.pi * ((c * d) % D) / D)
        R[:, 2 * c + 1] = -math.sqrt(2 / D) * np.sin(2 * math.pi * ((c * d) % D) / D)
    return R

def big_tables():
    out = []
    for k in range(512):
        c = cs(k, 512)[0]
        out.append(f'.set T{k},{bf16(math.sqrt(2 / 512) * c)}')
    out.append(f'.set T512,{bf16(1 / math.sqrt(512))}\n.set T513,{bf16(-1 / math.sqrt(512))}')
    out.append('''.altmacro
.macro E8 a,b,c,d,e,f,g,h
.short T\\a,T\\b,T\\c,T\\d,T\\e,T\\f,T\\g,T\\h
.endm
.macro ROW m,p,d
E8 %((\\m*(\\d)+\\p)&511),%((\\m*(\\d+1)+\\p)&511),%((\\m*(\\d+2)+\\p)&511),%((\\m*(\\d+3)+\\p)&511),%((\\m*(\\d+4)+\\p)&511),%((\\m*(\\d+5)+\\p)&511),%((\\m*(\\d+6)+\\p)&511),%((\\m*(\\d+7)+\\p)&511)
.endm
.macro Q4 d,c
.short T\\d
.endm
.macro RTQ d,c
.if \\c == 0
Q4 %(512+((\\d)&1))
Q4 512
.else
Q4 %((\\c*\\d)&511)
Q4 %((\\c*\\d+128)&511)
.endif
Q4 %(((\\c+1)*\\d)&511)
Q4 %(((\\c+1)*\\d+128)&511)
.endm
.p2align 8
RF:
.set jb,0
.rept 16
.set ks,0
.rept 32
.set l,0
.rept 64
.set j,jb*32+(l&31)
.set d0,ks*16+(l>>5)*8
.if j > 1
ROW %(j>>1),%(128*(j&1)),%d0
.elseif j == 1
.short T512,T512,T512,T512,T512,T512,T512,T512
.else
.short T512,T513,T512,T513,T512,T513,T512,T513
.endif
.set l,l+1
.endr
.set ks,ks+1
.endr
.set jb,jb+1
.endr
.p2align 8
RT:
.set db,0
.rept 16
.set ks,0
.rept 32
.set l,0
.rept 64
.set d,db*32+(l&31)
.set c0,ks*8+(l>>5)*2
RTQ %d,%c0
RTQ %d,%(c0+4)
.set l,l+1
.endr
.set ks,ks+1
.endr
.set db,db+1
.endr
.noaltmacro
''')
    return '\n'.join(out)

def RF_np():
    R = R_matrix()
    T = np.zeros((16, 32, 64, 8))
    for jb in range(16):
        for ks in range(32):
            for l in range(64):
                T[jb, ks, l] = R[16 * ks + 8 * (l >> 5) + np.arange(8), 32 * jb + (l & 31)]
    return T
def RT_np():
    R = R_matrix()
    T = np.zeros((16, 32, 64, 8))
    i = np.arange(8)
    for db in range(16):
        for ks in range(32):
            for l in range(64):
                T[db, ks, l] = R[32 * db + (l & 31), 16 * ks + 8 * (i >> 2) + 4 * (l >> 5) + (i & 3)]
    return T
```

```python
from common import *

class TileCfg:
    pass

def tile_main(k, R, mode, NP, priv_is_A, sSH, s_shoff, sPV, s_pv, s_w, PF=8, stats=None, s_tmp=None, s_ones=None,
              slot_rot=False, sh_rowstride=None, pre_issue=None):
    C = TileCfg()
    acc = [[R.v(16) for t in range(4)] for p in range(NP)]
    C.acc = acc
    vl16 = R.v(); vl31 = R.v(); vhalf = R.v(); vlane = R.v()
    C.vl31 = vl31; C.vhalf = vhalf; C.vlane = vlane; C.vl16 = vl16
    k(f'v_and_b32 v{vlane}, 63, v0')
    k(f'v_lshlrev_b32 v{vl16}, 4, v{vlane}')
    k(f'v_and_b32 v{vl31}, 31, v{vlane}')
    k(f'v_lshrrev_b32 v{vhalf}, 5, v{vlane}')
    ring = [[R.v(4) for p in range(NP)] for _ in range(PF)]
    B = [[R.v(4) for t in range(4)] for _ in range(2)]
    s_m0 = s_tmp; s_t1 = s_tmp + 1
    tA = R.v(); tB = R.v()
    if mode == 'rows':
        vD = [R.v(), R.v()]
        for par in range(2):
            k(f'v_lshrrev_b32 v{tA}, 4, v{vlane}')
            if par: k(f'v_add_u32 v{tA}, 4, v{tA}')
            k(f'v_xor_b32 v{tA}, v{tA}, v{vlane}')
            k(f'v_and_b32 v{tA}, 7, v{tA}')
            k(f'v_lshlrev_b32 v{tA}, 4, v{tA}')
            k(f'v_lshrrev_b32 v{tB}, 3, v{vlane}')
            k(f'v_lshl_or_b32 v{vD[par]}, v{tB}, 10, v{tA}')
        dma = [(kq * 16384 + ii * 1024, ii * 8192 + kq * 128, vD[ii & 1]) for kq in range(8) for ii in range(4)]
        k(f's_lshl_b32 s{s_m0}, s{s_w}, 12')
    elif mode == 'cols':
        vD = R.v()
        k(f'v_lshrrev_b32 v{tB}, 4, v{vlane}')
        k(f'v_lshlrev_b32 v{tA}, 2, v{tB}')
        k(f'v_xor_b32 v{tA}, v{tA}, v{vlane}')
        k(f'v_and_b32 v{tA}, 15, v{tA}')
        k(f'v_lshlrev_b32 v{tA}, 4, v{tA}')
        k(f'v_mul_u32_u24 v{tB}, {sh_rowstride}, v{tB}')
        k(f'v_add_u32 v{vD}, v{tA}, v{tB}')
        dma = [(ks * 4096, ks * 16 * sh_rowstride, vD) for ks in range(32)]
        k(f's_lshl_b32 s{s_m0}, s{s_w}, 10')
    elif mode == 'upair':
        vD = R.v()
        k(f'v_lshlrev_b32 v{tA}, 4, v{vl31}')
        k(f'v_lshl_or_b32 v{vD}, v{vhalf}, 13, v{tA}')
        dma = [(ks * 4096, ks * 65536, vD) for ks in range(32)]
        k(f's_lshl_b32 s{s_m0}, s{s_w}, 10')
    def issue_dma(n, tag):
        m0o, go, v = dma[n]
        def f():
            k(f's_add_u32 m0, s{s_m0}, {m0o}')
            k(f's_add_u32 s{s_t1}, s{s_shoff}, {go}')
            k(f'buffer_load_dwordx4 v{v}, s[{sSH}:{sSH+3}], s{s_t1} offen lds', tag=tag)
        return f
    def dtag(n): return 'd0' if n < 4 else 'd1' if n < 8 else 'd2' if n < 16 else 'd3'
    def issue_priv(ks):
        out = []
        for p in range(NP):
            def f(p=p):
                if ks and ks % 4 == 0: k(f's_add_u32 s{s_pv+p}, s{s_pv+p}, 4096')
                k(f'buffer_load_dwordx4 {vr(ring[ks % PF][p], 4)}, v{vl16}, s[{sPV}:{sPV+3}], s{s_pv+p} offen offset:{(ks & 3) * 1024}')
            out.append(f)
        return out
    for f in issue_priv(0): f()
    for n in range(0, 4): issue_dma(n, dtag(n))()
    for ks in range(1, 4):
        for f in issue_priv(ks): f()
    for n in range(4, 8): issue_dma(n, dtag(n))()
    for ks in range(4, PF):
        for f in issue_priv(ks): f()
    for n in range(8, 16): issue_dma(n, dtag(n))()
    if pre_issue: pre_issue(C)
    if mode == 'rows':
        vA = [[R.v() for kk in range(4)] for hi in range(2)]
        k(f'v_lshrrev_b32 v{tA}, 1, v{vl31}')
        k(f'v_and_b32 v{tA}, 7, v{tA}')
        k(f'v_xor_b32 v{tA}, v{tA}, v{vhalf}')
        for kk in range(4):
            k(f'v_xor_b32 v{tB}, {2 * kk}, v{tA}')
            k(f'v_lshlrev_b32 v{tB}, 4, v{tB}')
            k(f'v_lshl_or_b32 v{vA[0][kk]}, v{vl31}, 7, v{tB}')
            k(f'v_add_u32 v{vA[1][kk]}, 0x10000, v{vA[0][kk]}')
        def rd(ks, t, dst):
            kq, kk = ks >> 2, ks & 3
            return [f'ds_read_b128 {vr(dst, 4)}, v{vA[kq >> 2][kk]} offset:{(kq & 3) * 16384 + t * 4096}']
    elif mode == 'cols':
        vA = [[R.v() for t in range(4)] for hi in range(2)]
        tC = R.v(); tD = R.v()
        k(f'v_bfe_u32 v{tA}, v{vlane}, 2, 2')
        k(f'v_lshl_add_u32 v{tB}, v{vhalf}, 3, v{tA}')
        k(f'v_lshlrev_b32 v{tB}, 8, v{tB}')
        k(f'v_bfe_u32 v{tC}, v{vlane}, 4, 1')
        k(f'v_lshl_or_b32 v{tB}, v{tC}, 5, v{tB}')
        k(f'v_and_b32 v{tC}, 3, v{vlane}')
        k(f'v_lshl_or_b32 v{tB}, v{tC}, 3, v{tB}')
        for t in range(4):
            k(f'v_xor_b32 v{tD}, {t}, v{tA}')
            k(f'v_lshl_or_b32 v{vA[0][t]}, v{tD}, 6, v{tB}')
            k(f'v_add_u32 v{vA[1][t]}, 0x10000, v{vA[0][t]}')
        def rd(ks, t, dst):
            o = (ks & 15) * 4096
            return [f'ds_read_b64_tr_b16 {vr(dst, 2)}, v{vA[ks >> 4][t]} offset:{o}',
                    f'ds_read_b64_tr_b16 {vr(dst + 2, 2)}, v{vA[ks >> 4][t]} offset:{o + 1024}']
    elif mode == 'upair':
        vA = [[R.v() for t in range(4)] for hi in range(2)]
        k(f'v_lshlrev_b32 v{tA}, 2, v{vl31}')
        k(f'v_lshl_or_b32 v{tA}, v{vhalf}, 10, v{tA}')
        for t in range(4):
            if slot_rot:
                k(f's_add_u32 s{s_t1}, s{s_w}, {t}')
                k(f's_and_b32 s{s_t1}, s{s_t1}, 3')
                k(f's_lshl_b32 s{s_t1}, s{s_t1}, 7')
                k(f'v_add_u32 v{vA[0][t]}, s{s_t1}, v{tA}')
            else:
                k(f'v_add_u32 v{vA[0][t]}, {t * 128}, v{tA}')
            k(f'v_add_u32 v{vA[1][t]}, 0x10000, v{vA[0][t]}')
        def rd(ks, t, dst):
            c = 8 * (ks & 15)
            return [f'ds_read2st64_b32 {vr(dst, 2)}, v{vA[ks >> 4][t]} offset0:{2 * c} offset1:{2 * c + 2}',
                    f'ds_read2st64_b32 {vr(dst + 2, 2)}, v{vA[ks >> 4][t]} offset0:{2 * c + 8} offset1:{2 * c + 10}']
    st = None
    if stats:
        st = [R.v(), R.v()]
        k(f'v_mov_b32 v{st[0]}, 0\nv_mov_b32 v{st[1]}, 0')
        if stats == 'u':
            vmask = R.v(); vtm = R.v()
            k(f'v_mov_b32 v{vmask}, -1')
            k(f'v_cmp_gt_u32 vcc, 32, v{vlane}')
            k(f'v_mov_b32 v{vtm}, 0xffff')
            k(f'v_cndmask_b32 v{vmask}, v{vmask}, v{vtm}, vcc')
    C.st = st
    k.barrier('d0')
    for t in range(4):
        for x in rd(0, t, B[0][t]): k(x)
    late = list(range(16, 32))
    for ks in range(32):
        cur = B[ks & 1]; nxt = B[(ks + 1) & 1]
        if ks in (3, 7, 15):
            k.barrier({3: 'd1', 7: 'd2', 15: 'd3'}[ks])
        mf = []
        for t in range(4):
            for p in range(NP):
                a = acc[p][t]; P = ring[ks % PF][p]
                c = '0' if ks == 0 else vr(a, 16)
                x, y = (P, cur[t]) if priv_is_A else (cur[t], P)
                mf.append(f'v_mfma_f32_32x32x16_bf16 {vr(a, 16)}, {vr(x, 4)}, {vr(y, 4)}, {c}')
        fill = []
        if ks + 1 < 32:
            for t in range(4): fill += rd(ks + 1, t, nxt[t])
        sf = []
        if stats == 'x':
            for i in range(4):
                sf.append(f'v_dot2c_f32_bf16 v{st[0]}, v{cur[0] + i}, v{cur[0] + i}')
                sf.append(f'v_dot2c_f32_bf16 v{st[1]}, s{s_ones}, v{cur[0] + i}')
        elif stats == 'u':
            for i in range(4):
                if ks == 0 and i == 0:
                    sf.append(f'v_and_b32 v{vtm}, v{vmask}, v{cur[0]}')
                    sf.append(f'v_dot2c_f32_bf16 v{st[0]}, v{vtm}, v{vtm}')
                else:
                    sf.append(f'v_dot2c_f32_bf16 v{st[i & 1]}, v{cur[0] + i}, v{cur[0] + i}')
        pl = []
        if ks >= 1 and ks - 1 + PF < 32: pl = issue_priv(ks - 1 + PF)
        dm = []
        if ks < 8:
            for n in late[2 * ks:2 * ks + 2]: dm.append(issue_dma(n, dtag(n)))
        merged = []
        a, b = list(fill), pl + list(sf) + dm
        while a or b:
            if a: merged.append(a.pop(0))
            if b: merged.append(b.pop(0))
        interleave(k, mf, merged)
    C.B = B; C.ring = ring; C.tA = tA; C.tB = tB
    return C

def half_sum(k, v, tmp):
    k(f'v_mov_b32 v{tmp}, v{v}')
    k(f'v_permlane32_swap_b32 v{v}, v{tmp}')
    k(f'v_add_f32 v{v}, v{v}, v{tmp}')
```

```python
import sys, os
sys.path.insert(0, os.path.dirname(os.path.abspath(__file__)))
from common import *
import importlib
HDR = open('interleave_layers__spectral_gfnet__glu_gated_swiglu__prompt.s.ref').read().split('; Override launch')[0]

def build(upto=None):
    import q0
    ks = [('q0_kernel', 240, 131072, lambda n: q0.q0(n))]
    try:
        import qrest
        ks += qrest.kernels()
    except ImportError:
        pass
    if upto: ks = ks[:upto]
    s = HDR
    for n, g, lds, f in ks: s += f'; @launch kernel={n} grid=({g},1,1) block=(256,1,1) lds={lds}\n'
    s += '.amdgcn_target "amdgcn-amd-amdhsa--gfx950"\n.text\n'
    for n, g, lds, f in ks:
        print(n); s += f(n)
    s += '.section .rodata,"a"\n' + T.big_tables() + T.emit_words('CT', T.col_tables())
    return s

if __name__ == '__main__':
    out = sys.argv[1] if len(sys.argv) > 1 else 'out.s'
    s = build()
    open(out, 'w').write(s)
    print('bytes', len(s))
```
